```python
import torch

def _softmax(x, axis=-1):
    return torch.softmax(x, dim=axis)
def _gelu(x):
    return torch.nn.functional.gelu(x, approximate="tanh")
def _silu(x):
    return torch.nn.functional.silu(x)
def _sigmoid(x):
    return torch.sigmoid(x)
def _layernorm(x, axis=-1, eps=1e-5):
    m = x.mean(dim=axis, keepdim=True)
    v = x.var(dim=axis, keepdim=True, unbiased=False)
    return (x - m) / torch.sqrt(v + eps)
def _scatter_add(tgt, idx, src, axis=0):
    return tgt.clone().index_add_(axis, idx, src)
def _segment_sum(src, seg, n):
    out = torch.zeros((n,) + src.shape[1:], dtype=src.dtype)
    return out.index_add_(0, seg, src)
def _pad(x, pw):
    flat = tuple(v for pair in reversed(pw) for v in pair)
    return torch.nn.functional.pad(x, flat)

kernel_name = 'gated_mix__grouped_kv_mqa__dense_activation_gelu__prompt'

def setup_inputs():

    _w = (lambda a: (lambda t: t.to(torch.bfloat16) if t.is_floating_point() else t)(torch.as_tensor(a)))
    def _A_setup():
        B, S, D, H = 1, 2048, 448, 16
        Dh = D // H
        return {
            "x": _w((lambda *s: torch.randn(*s, dtype=torch.bfloat16) * 0.05)(B, S, D)),
            "wq": _w((lambda *s: torch.randn(*s, dtype=torch.bfloat16) * 1.6)(D, H * Dh)),
            "wk": _w((lambda *s: torch.randn(*s, dtype=torch.bfloat16) * 1.6)(D, Dh)),
            "wv": _w((lambda *s: torch.randn(*s, dtype=torch.bfloat16) * 0.05)(D, Dh)),
            "wo": _w((lambda *s: torch.randn(*s, dtype=torch.bfloat16) * 0.05)(H * Dh, D)),
        }
    _A_in = _A_setup()

    def _B_setup():
        B, S, D, F = 1, 2048, 448, 1792
        return {
            "x": _w((lambda *s: torch.randn(*s, dtype=torch.bfloat16) * 0.05)(B, S, D)),
            "w1": _w((lambda *s: torch.randn(*s, dtype=torch.bfloat16) * 3.2)(D, F) * (D ** -0.5)),
            "b1": _w((lambda *s: torch.randn(*s, dtype=torch.bfloat16) * 3.2)(F) * 0.01),
            "w2": _w((lambda *s: torch.randn(*s, dtype=torch.bfloat16) * 0.4)(F, D) * (F ** -0.5)),
            "b2": _w((lambda *s: torch.randn(*s, dtype=torch.bfloat16) * 0.8)(D) * 0.01),
        }
    _B_in = _B_setup()

    return {
        "A_x": _A_in["x"],
        "A_wq": _A_in["wq"],
        "A_wk": _A_in["wk"],
        "A_wv": _A_in["wv"],
        "A_wo": _A_in["wo"],
        "B_x": _B_in["x"],
        "B_w1": _B_in["w1"],
        "B_b1": _B_in["b1"],
        "B_w2": _B_in["w2"],
        "B_b2": _B_in["b2"],
        "gate_w": _w((lambda *s: torch.randn(*s, dtype=torch.bfloat16) * 0.05)(448) * 16.0),
    }

def reference(A_x, A_wq, A_wk, A_wv, A_wo, B_x, B_w1, B_b1, B_w2, B_b2, gate_w):
    def _A_ref(x, wq, wk, wv, wo):
        B, S, D = x.shape
        H = 16
        Dh = D // H
        q = (lambda x, *d: x.permute(*d))((x @ wq).reshape(B, S, H, Dh), 0, 2, 1, 3)
        k = x @ wk
        v = x @ wv
        scores = torch.einsum("bhqd,bkd->bhqk", q, k) * (Dh ** -0.5)
        p = _softmax(scores, axis=-1)
        o = torch.einsum("bhqk,bkd->bhqd", p, v)
        return (lambda x, *d: x.permute(*d))(o, 0, 2, 1, 3).reshape(B, S, H * Dh) @ wo

    def _B_ref(x, w1, b1, w2, b2):
        h = torch.einsum("bsd,df->bsf", x, w1) + b1
        h = _gelu(h)
        return torch.einsum("bsf,fd->bsd", h, w2) + b2

    x = A_x
    g = _sigmoid((x * gate_w).sum(-1, keepdims=True))
    a = _A_ref(x, A_wq, A_wk, A_wv, A_wo)
    b = _B_ref(x, B_w1, B_b1, B_w2, B_b2)
    return g * a + (1 - g) * b
```

```python
import re

REG_RE = re.compile(r'^(-?)(abs\()?([vas])(\d+)\)?$|^(-?)([vas])\[(\d+):(\d+)\]$')

def parse_reg(tok):
    tok = tok.strip().replace('|', '')
    if tok in ('vcc',): return [('s', 106), ('s', 107)]
    if tok == 'vcc_lo': return [('s', 106)]
    if tok == 'vcc_hi': return [('s', 107)]
    if tok == 'exec': return [('s', 126), ('s', 127)]
    if tok == 'exec_lo': return [('s', 126)]
    if tok == 'exec_hi': return [('s', 127)]
    if tok == 'm0': return [('s', 124)]
    m = REG_RE.match(tok)
    if not m: return []
    if m.group(3): return [(m.group(3), int(m.group(4)))]
    return [(m.group(6), i) for i in range(int(m.group(7)), int(m.group(8)) + 1)]

TRANS = ('v_exp_f32', 'v_log_f32', 'v_rcp_f32', 'v_rsq_f32', 'v_sqrt_f32', 'v_sin_f32', 'v_cos_f32', 'v_rcp_iflag_f32')

def base(op):
    return re.sub(r'_e(32|64)$', '', op)

class Ins:
    __slots__ = ('text', 'op', 'kind', 'rd', 'wr', 'srcC', 'srcAB', 'lds_dma', 'store_data', 'label', 'target', 'wide', 'note')
    def __init__(self, text):
        self.text = text
        self.label = None; self.target = None; self.srcC = []; self.srcAB = []; self.lds_dma = False
        self.store_data = []; self.wide = False; self.note = ''
        t = text.split(';')[0].strip()
        if t.endswith(':'):
            self.op = ''; self.kind = 'label'; self.label = t[:-1]; self.rd = []; self.wr = []; return
        if t.startswith('.') or t == '':
            self.op = ''; self.kind = 'dir'; self.rd = []; self.wr = []; return
        parts = t.split(None, 1)
        op = parts[0]; self.op = op
        rest = parts[1] if len(parts) > 1 else ''
        ops = []; depth = 0; cur = ''
        for ch in rest:
            if ch == '[': depth += 1
            if ch == ']': depth -= 1
            if ch == ',' and depth == 0: ops.append(cur.strip()); cur = ''
            else: cur += ch
        if cur.strip(): ops.append(cur.strip())
        mods = []
        if ops:
            l = ops[-1].split()
            if len(l) > 1 and not ops[-1].startswith('vmcnt') and not ops[-1].startswith('lgkmcnt'):
                ops[-1] = l[0]; mods = l[1:]
        R = lambda i: parse_reg(ops[i]) if i < len(ops) else []
        rd = []; wr = []
        EXEC = [('s', 126), ('s', 127)]
        if op.startswith('v_mfma'):
            self.kind = 'mfma'; wr = R(0); self.srcAB = R(1) + R(2); self.srcC = R(3); rd = self.srcAB + self.srcC
        elif op.startswith('ds_'):
            self.kind = 'ds'
            if op.startswith('ds_read') or op.startswith('ds_bpermute') or op.startswith('ds_swizzle'):
                wr = R(0); rd = sum((R(i) for i in range(1, len(ops))), [])
            elif '_rtn_' in op:
                wr = R(0); rd = sum((R(i) for i in range(1, len(ops))), [])
            else:
                rd = sum((R(i) for i in range(len(ops))), [])
        elif op.startswith('buffer_') or op.startswith('global_'):
            self.kind = 'vmem'
            if 'lds' in mods or op.startswith('global_load_lds'):
                self.lds_dma = True; rd = sum((R(i) for i in range(len(ops))), []) + [('s', 124)]
            elif '_load' in op:
                wr = R(0); rd = sum((R(i) for i in range(1, len(ops))), [])
                if 'd16' in op: rd = rd + wr
            elif op in ('buffer_wbl2', 'buffer_inv'):
                pass
            else:
                rd = sum((R(i) for i in range(len(ops))), [])
                self.store_data = R(0) if op.startswith('buffer_') else R(1)
                self.wide = ('x3' in op or 'x4' in op)
                if 'atomic' in op and 'sc0' in mods: wr = R(0)
        elif op.startswith('s_load') or op.startswith('s_buffer_load') or op in ('s_memtime', 's_memrealtime'):
            self.kind = 'smem'; wr = R(0); rd = sum((R(i) for i in range(1, len(ops))), [])
        elif op.startswith('s_'):
            self.kind = 'salu'
            if op.startswith('s_cbranch') or op == 's_branch':
                self.kind = 'branch'; self.target = ops[0]
                if 'vcc' in op: rd = [('s', 106), ('s', 107)]
                if 'exec' in op: rd = EXEC
            elif op in ('s_waitcnt', 's_nop', 's_barrier', 's_endpgm', 's_sleep', 's_setprio'):
                self.kind = op
            elif op.startswith('s_cmp') or op.startswith('s_bitcmp'):
                rd = sum((R(i) for i in range(len(ops))), [])
            else:
                wr = R(0); rd = sum((R(i) for i in range(1, len(ops))), [])
                if 'saveexec' in op: wr = wr + EXEC; rd = rd + EXEC
                if op in ('s_addk_i32', 's_mulk_i32'): rd = rd + wr
        elif op.startswith('v_'):
            self.kind = 'valu'
            if op.startswith('v_permlane') and 'swap' in op:
                wr = R(0) + R(1); rd = R(0) + R(1)
            elif op.startswith('v_add_co') or op.startswith('v_sub_co') or op.startswith('v_addc_co') or op.startswith('v_subb_co'):
                wr = R(0) + R(1); rd = sum((R(i) for i in range(2, len(ops))), [])
            else:
                wr = R(0); rd = sum((R(i) for i in range(1, len(ops))), [])
                if op.startswith('v_fmac') or op.startswith('v_pk_fmac') or op.startswith('v_writelane') or 'dpp' in op or op.startswith('v_dot2c'): rd = rd + wr
                if op.startswith('v_cmpx'): wr = wr + EXEC
        else:
            raise ValueError('unknown op ' + text)
        self.rd = rd; self.wr = wr
    def states(self):
        if self.kind in ('label', 'dir'): return 0
        if self.kind == 's_nop': return int(self.text.split(';')[0].split()[1], 0) + 1
        return 1

def mfma_passes(op):
    if '32x32x16' in op: return 8
    if '16x16x32' in op: return 4
    raise ValueError(op)

def required(p, c):
    need = 0
    pw = set(p.wr);
    vw = {r for r in pw if r[0] in 'va'}
    sw = {r for r in pw if r[0] == 's'}
    if p.kind == 'valu':
        if c.kind == 'mfma' and vw & set(c.rd): need = max(need, 2)
        if c.kind == 'valu':
            if c.op.startswith('v_permlane') and vw & set(c.rd): need = max(need, 2)
            if 'dpp' in c.op and vw & set(c.rd): need = max(need, 2)
            if (c.op.startswith('v_readlane') or c.op.startswith('v_readfirstlane')) and vw & set(c.rd): need = max(need, 1)
            if base(p.op) in TRANS and base(c.op) not in TRANS and vw & set(c.rd): need = max(need, 1)
            if sw & set(c.rd): need = max(need, 4 if (c.op.startswith('v_readlane') or c.op.startswith('v_writelane')) else 2)
            if p.op.startswith('v_cmpx') and (c.op.startswith('v_readlane') or c.op.startswith('v_readfirstlane') or c.op.startswith('v_permlane') or c.op.startswith('v_writelane')): need = max(need, 4)
        if base(p.op) in TRANS and c.kind in ('vmem', 'ds') and vw & set(c.rd): need = max(need, 1)
        if c.kind == 'vmem' and sw & set(c.rd): need = max(need, 5)
        if c.kind == 'branch' and ('vcc' in c.op or 'exec' in c.op) and sw & set(c.rd): need = max(need, 5)
        if c.kind in ('salu', 'smem') and sw & set(c.rd): need = max(need, 1)
        if c.kind == 'mfma' and p.op.startswith('v_cmpx'): need = max(need, 4)
    if p.kind == 'salu' and ('s', 124) in pw and c.kind == 'vmem' and c.lds_dma: need = max(need, 1)
    if p.kind == 'mfma':
        n = mfma_passes(p.op)
        tAB = {4: 8, 8: 12}[n]; tC = {4: 6, 8: 10}[n]; tW = {4: 3, 8: 7}[n]
        if c.kind == 'mfma':
            if vw & set(c.srcAB): need = max(need, tAB)
            if vw & set(c.srcC):
                if not (list(c.srcC) == list(p.wr) and mfma_passes(c.op) == n): need = max(need, tC)
            elif vw & set(c.wr): need = max(need, tC)
        elif c.kind in ('valu', 'vmem', 'ds'):
            if vw & (set(c.rd) | set(c.wr)): need = max(need, tAB)
            if c.kind == 'valu' and set(p.srcC) & set(c.wr): need = max(need, tW)
    if p.kind == 'vmem' and p.wide and p.store_data:
        if set(p.store_data) & set(c.wr): need = max(need, 2 if c.kind == 'valu' else 1)
    if p.kind == 'ds' and p.op in ('ds_write_b128', 'ds_write_b96') :
        pass
    return need

class Prog:
    def __init__(self):
        self.ins = []
        self.vm = 0; self.lg = 0
        self.auto_nops = 0
    def e(self, text, note=''):
        i = Ins(text)
        if i.kind not in ('label', 'dir'):
            dist = 0; need = 0
            for p in reversed(self.ins[-40:]):
                if p.kind in ('label', 'dir'): continue
                if p.kind in ('branch',) and p.op == 's_branch': break
                if p.kind == 's_endpgm': break
                r = required(p, i)
                if r - dist > need: need = r - dist
                dist += p.states()
                if dist > 20: break
            while need > 0:
                k = min(need, 16)
                self.ins.append(Ins(f's_nop {k-1}')); self.auto_nops += k; need -= k
        self.ins.append(i)
        if i.kind == 'vmem': self.vm += 1; return ('vm', self.vm)
        if i.kind == 'ds': self.lg += 1; return ('lg', self.lg)
        return None
    def many(self, text):
        for l in text.strip('\n').split('\n'):
            l = l.strip()
            if l: self.e(l)
    def wait(self, *toks):
        vmn = None; lgn = None
        for t in toks:
            if t is None: continue
            if t[0] == 'vm': n = self.vm - t[1]; vmn = n if vmn is None else min(vmn, n)
            else: n = self.lg - t[1]; lgn = n if lgn is None else min(lgn, n)
        s = []
        if vmn is not None: s.append(f'vmcnt({min(vmn, 63)})')
        if lgn is not None: s.append(f'lgkmcnt({min(lgn, 15)})')
        if s: self.e('s_waitcnt ' + ' '.join(s))
    def label(self, name): self.e(name + ':')
    def text(self):
        out = []
        for i in self.ins:
            if i.kind == 'label' : out.append(i.text)
            elif i.kind == 'dir': out.append(i.text)
            else: out.append('    ' + i.text)
        return '\n'.join(out) + '\n'
    def check_branches(self):
        lab = {i.label: n for n, i in enumerate(self.ins) if i.kind == 'label'}
        errs = []
        for n, b in enumerate(self.ins):
            if b.kind != 'branch' or b.target not in lab: continue
            pre = [p for p in self.ins[max(0, n - 30):n + 1] if p.kind not in ('label', 'dir')]
            post = [p for p in self.ins[lab[b.target]:lab[b.target] + 30] if p.kind not in ('label', 'dir')]
            d2 = 0
            for c in post:
                d = d2
                for p in reversed(pre):
                    r = required(p, c)
                    if r > d: errs.append(f'branch hazard: "{p.text}" -> "{c.text}" need {r} have {d} (via {b.text})')
                    d += p.states()
                    if d > 20: break
                d2 += c.states()
                if d2 > 20 or c.kind in ('s_endpgm',) or c.op == 's_branch': break
        return errs
    def check_counters(self, start=0, end=None):
        errs = []
        vmq = []; lgq = []; smem = []
        for n, i in enumerate(self.ins[start:end]):
            if i.kind in ('label', 'dir'): continue
            if i.kind == 's_waitcnt':
                m = re.search(r'vmcnt\((\d+)\)', i.text)
                if m:
                    k = int(m.group(1)); vmq = vmq[len(vmq) - k:] if k < len(vmq) else vmq
                    if k == 0: vmq = []
                m = re.search(r'lgkmcnt\((\d+)\)', i.text)
                if m:
                    k = int(m.group(1))
                    if k == 0: lgq = []; smem = []
                    elif not smem: lgq = lgq[len(lgq) - k:] if k < len(lgq) else lgq
                continue
            touched = set(i.rd) | set(i.wr)
            for q, nm in ((vmq, 'vm'), (lgq, 'lg'), (smem, 'smem')):
                for o in q:
                    if set(o.wr) & touched:
                        if (nm == 'vm' and i.kind == 'vmem' or nm == 'lg' and i.kind == 'ds') and not (set(o.wr) & set(i.rd)): continue
                        errs.append(f'[{start+n}] "{i.text}" touches pending {nm} dest of "{o.text}"')
            if i.kind == 'vmem':
                vmq.append(i)
                if len(vmq) > 63: errs.append(f'[{start+n}] vmcnt overflow note (>63 outstanding) at "{i.text}"')
            elif i.kind == 'ds': lgq.append(i)
            elif i.kind == 'smem': smem.append(i)
            if i.kind == 's_endpgm' or i.op == 's_branch': vmq = []; lgq = []; smem = []
        return errs
```

```python
import sys, math, struct
sys.path.insert(0, 'gen')
from asmlib import Prog

NAME = "gated_mix__grouped_kv_mqa__dense_activation_gelu__prompt"
def f32(x): return '0x%08x' % struct.unpack('<I', struct.pack('<f', x))[0]

WS_G = 0; WS_FKV = 4096; WS_FO = 16384; WS_Z = 65536; WS_KV = 131072; WS_O = 0x80000; WS_Y = 0x300000
WS_SIZE = 0x1100000
X_OFF = 0; WQ_OFF = 57344; RING_OFF = 114688; H_OFF = WQ_OFF; QX_OFF = WQ_OFF + 32768; MRG_OFF = RING_OFF; WO_OFF = 0
LDS_BYTES = 163840
NSLOT = 12
BIG = 0x7F000000
pX, pWQ, pWK, pWV, pWO, pBX, pW1, pB1, pW2, pB2, pGW, pOUT, pDBG, pWS = [16 + 2 * i for i in range(14)]
SX, SWQ, SEX, SW1, SW2, SWO, SWS, SOUT, SB = [f's[{r}:{r+3}]' for r in (44, 48, 52, 56, 60, 64, 68, 72, 76)]
sW, sG, sJ, sI, sQ4, sTAG, sCH, sRING = 's3', 's4', 's5', 's6', 's7', 's8', 's9', 's10'
sT0, sT1, sT2, sT3, sT4, sT5 = 's80', 's81', 's82', 's83', 's84', 's85'
sW1A, sW1B, sW2O, sW2D, sOFF, sOFF3 = 's86', 's87', 's88', 's89', 's90', 's91'
sHI = 's[92:93]'
sSAVE = 's[94:95]'
sYB, sKVB, sCNT, sN0 = 's96', 's97', 's98', 's99'
sTT, sCT = 's11', 's12'
vLANE, vL16, vSL1, vSL2, vR1, vR2 = 0, 1, 2, 3, 4, 5
vXO = [6, 7, 8, 9]; vXT = [10, 11, 12, 13]
vWQR, vHWO, vHWT, vHR, vG = 14, 15, 16, 17, 18
vK1 = 19
T = list(range(20, 32))
vQP = 32
GT = list(range(40, 48)); GP = 48
ACC_A, ACC_B = 64, 96
QACC, BIAS_A, BIAS_B, BRAW, EXT, DUM = 128, 144, 160, 176, 192, 200
YACC = 128
aWR = 224

def vr(b, n): return f'v[{b}:{b+n-1}]'
def ar(b, n): return f'a[{b}:{b+n-1}]'
MFMA = 'v_mfma_f32_32x32x16_bf16'

class Filler:
    def __init__(self, ops): self.ops = list(ops); self.i = 0
    def __call__(self, k):
        while k > 0 and self.i < len(self.ops):
            self.ops[self.i](); self.i += 1; k -= 1
    def drain(self): self(1 << 30)

def build(stop=None, dbg=False):
    p = Prog(); e = p.e
    K = NAME + '_kernel'
    p.label(K)
    e('s_cmp_ge_u32 s2, 256'); e('s_cbranch_scc1 L_end')
    e('s_load_dwordx16 s[16:31], s[0:1], 0'); e('s_load_dwordx8 s[32:39], s[0:1], 64'); e('s_load_dwordx4 s[40:43], s[0:1], 96')
    e('s_getpc_b64 s[14:15]')
    e(f'v_lshrrev_b32 v{T[0]}, 6, v0'); e('v_and_b32 v0, 63, v0'); e(f'v_readfirstlane_b32 {sW}, v{T[0]}')
    e(f's_lshr_b32 {sI}, s2, 3'); e(f's_and_b32 {sT0}, s2, 1'); e(f's_bfe_u32 {sQ4}, s2, 0x20001')
    e(f's_lshr_b32 {sG}, {sI}, 1'); e(f's_lshl_b32 {sT0}, {sT0}, 4'); e(f's_add_u32 {sG}, {sG}, {sT0}')
    e(f's_and_b32 {sJ}, {sI}, 1'); e(f's_lshl_b32 {sT0}, {sQ4}, 1'); e(f's_add_u32 {sJ}, {sJ}, {sT0}')
    e(f's_and_b32 {sTT}, {sW}, 1'); e(f's_lshr_b32 {sCT}, {sW}, 1')
    e(f's_mul_i32 {sRING}, {sW}, {NSLOT*1024}'); e(f's_add_u32 {sRING}, {sRING}, {RING_OFF}')
    e(f's_mov_b32 s92, 0'); e('s_mov_b32 s93, -1')
    L = vLANE
    e(f'v_lshlrev_b32 v{vL16}, 4, v{L}')
    e(f'v_lshrrev_b32 v{T[0]}, 2, v{L}'); e(f'v_and_b32 v{T[1]}, 3, v{L}'); e(f'v_lshlrev_b32 v{T[1]}, 4, v{T[1]}')
    e(f'v_mul_u32_u24 v{vSL1}, 3584, v{T[0]}'); e(f'v_add_u32 v{vSL1}, v{vSL1}, v{T[1]}')
    e(f'v_mul_u32_u24 v{vSL2}, 896, v{T[0]}'); e(f'v_add_u32 v{vSL2}, v{vSL2}, v{T[1]}')
    vH, vGRP, vRR, vC = T[2], T[3], T[4], T[5]
    e(f'v_lshrrev_b32 v{vH}, 5, v{L}'); e(f'v_bfe_u32 v{vGRP}, v{L}, 4, 1'); e(f'v_bfe_u32 v{vRR}, v{L}, 2, 2'); e(f'v_and_b32 v{vC}, 3, v{L}')
    vPB = T[6]
    e(f'v_lshlrev_b32 v{vPB}, 5, v{vGRP}'); e(f'v_lshl_add_u32 v{vPB}, v{vC}, 3, v{vPB}')
    e(f'v_lshl_add_u32 v{T[7]}, v{vH}, 3, v{vRR}')
    e(f'v_lshl_add_u32 v{T[8]}, v{vH}, 2, v{vRR}')
    e(f'v_lshl_add_u32 v{vR1}, v{T[7]}, 6, v{vPB}'); e(f'v_add_u32 v{vR1}, {sRING}, v{vR1}')
    e(f'v_lshl_add_u32 v{vR2}, v{T[8]}, 6, v{vPB}'); e(f'v_add_u32 v{vR2}, {sRING}, v{vR2}')
    e(f's_mul_i32 {sT0}, {sCT}, 56'); e(f's_lshl_b32 {sT1}, {sCT}, 3'); e(f's_add_u32 {sT1}, {sT1}, 112')
    e(f'v_add_u32 v{T[9]}, {sT0}, v{vPB}'); e(f'v_mov_b32 v{T[10]}, {sT1}')
    e(f'v_cmp_eq_u32 vcc, 56, v{vPB}'); e(f'v_cndmask_b32 v{T[9]}, v{T[9]}, v{T[10]}, vcc')
    e(f'v_lshrrev_b32 v{T[10]}, 1, v{vRR}'); e(f'v_lshlrev_b32 v{T[10]}, 6, v{T[10]}')
    e(f'v_xor_b32 v{T[9]}, v{T[9]}, v{T[10]}')
    e(f'v_lshl_add_u32 v{vWQR}, v{T[7]}, 7, v{T[9]}'); e(f'v_add_u32 v{vWQR}, {WQ_OFF}, v{vWQR}')
    vWOR = T[11]
    e(f's_lshl_b32 {sT0}, {sCT}, 6'); e(f'v_add_u32 v{T[9]}, {sT0}, v{vPB}'); e(f'v_xor_b32 v{T[9]}, v{T[9]}, v{T[10]}')
    e(f'v_lshl_add_u32 v{vWOR}, v{T[8]}, 7, v{T[9]}')
    e(f'v_and_b32 v{T[7]}, 31, v{L}'); e(f'v_bfe_u32 v{T[8]}, v{L}, 1, 3')
    e(f's_lshl_b32 {sT0}, {sTT}, 12'); e(f'v_lshlrev_b32 v{T[7]}, 7, v{T[7]}'); e(f'v_add_u32 v{T[7]}, {sT0}, v{T[7]}')
    for q in range(4):
        e(f'v_add_u32 v{T[9]}, {2*q}, v{vH}'); e(f'v_xor_b32 v{T[9]}, v{T[9]}, v{T[8]}')
        e(f'v_lshl_add_u32 v{vXO[q]}, v{T[9]}, 4, v{T[7]}'); e(f'v_xor_b32 v{vXT[q]}, 4096, v{vXO[q]}')
    e(f's_lshl_b32 {sT0}, {sW}, 12'); e(f's_lshl_b32 {sT1}, {sTT}, 11'); e(f's_add_u32 {sT0}, {sT0}, {sT1}'); e(f's_add_u32 {sT0}, {sT0}, {H_OFF}')
    e(f'v_add_u32 v{vHWO}, {sT0}, v{vL16}'); e(f'v_xor_b32 v{vHWT}, 2048, v{vHWO}'); e(f'v_add_u32 v{vHR}, {H_OFF}, v{vL16}')
    e(f'v_mov_b32 v{vK1}, {f32(-2.0*math.log2(math.e)*math.sqrt(2/math.pi)*0.044715)}')
    vXD0, vXD1, vWD = T[0], T[1], T[2]
    e(f'v_lshrrev_b32 v{T[7]}, 3, v{L}'); e(f'v_mul_u32_u24 v{T[7]}, 896, v{T[7]}')
    e(f'v_and_b32 v{T[8]}, 7, v{L}'); e(f'v_lshrrev_b32 v{T[9]}, 4, v{L}')
    e(f'v_xor_b32 v{T[10]}, v{T[8]}, v{T[9]}'); e(f'v_lshl_add_u32 v{vXD0}, v{T[10]}, 4, v{T[7]}')
    e(f'v_xor_b32 v{T[10]}, 4, v{T[10]}'); e(f'v_lshl_add_u32 v{vXD1}, v{T[10]}, 4, v{T[7]}'); e(f'v_add_u32 v{vXD1}, {7168-1024}, v{vXD1}')
    e(f'v_and_b32 v{T[9]}, 1, v{T[9]}'); e(f'v_lshlrev_b32 v{T[9]}, 2, v{T[9]}'); e(f'v_xor_b32 v{T[10]}, v{T[8]}, v{T[9]}')
    e(f'v_lshl_add_u32 v{vWD}, v{T[10]}, 4, v{T[7]}')
    e(f'v_cmp_ne_u32 s[100:101], 7, v{T[10]}')
    vWOD = 30
    e(f'v_mov_b32 v{vWOD}, v{vWD}')
    e('s_waitcnt lgkmcnt(0)')
    def srd(S, ptr, n):
        r = int(S[2:4]); e(f's_mov_b32 s{r}, s{ptr}'); e(f's_and_b32 s{r+1}, s{ptr+1}, 0xffff'); e(f's_mov_b32 s{r+2}, {n}'); e(f's_mov_b32 s{r+3}, 0x00020000')
    srd(SX, pX, 2048*896); srd(SWQ, pWQ, 448*896); srd(SW1, pW1, 448*3584); srd(SWS, pWS, WS_SIZE)
    e(f'v_mov_b32 v{T[3]}, 0')
    tG = e(f'buffer_load_dword v{vG}, v{T[3]}, {SWS}, 0 offen offset:{WS_G} sc1')
    e(f's_mul_i32 {sOFF}, {sG}, {64*896}'); e(f's_mul_i32 {sT0}, {sW}, {16*896}'); e(f's_add_u32 {sOFF}, {sOFF}, {sT0}')
    e(f's_lshl_b32 {sT1}, {sW}, 11')
    for kb in range(7):
        e(f's_add_u32 m0, {sT1}, {X_OFF + kb*8192}')
        if kb: e(f's_add_u32 {sOFF}, {sOFF}, 128')
        e(f'buffer_load_dwordx4 v{vXD0}, {SX}, {sOFF} offen lds')
        e(f'buffer_load_dwordx4 v{vXD1}, {SX}, {sOFF} offen offset:1024 lds')
    e(f's_mul_i32 {sOFF}, {sW}, {112*896}'); e(f's_mul_i32 {sT0}, {sJ}, 112'); e(f's_add_u32 {sOFF}, {sOFF}, {sT0}')
    e(f's_mul_i32 {sT1}, {sW}, 14336')
    e('s_mov_b64 exec, s[100:101]')
    for i in range(14):
        if i % 4 == 0: e(f's_add_u32 m0, {sT1}, {WQ_OFF + i*1024}')
        if i: e(f's_add_u32 {sOFF}, {sOFF}, {7168 - 1024 if i % 4 else 7168 + 3072}')
        tWQ = e(f'buffer_load_dwordx4 v{vWD}, {SWQ}, {sOFF} offen offset:{(i%4)*1024} lds')
    e('s_mov_b64 exec, -1')
    e(f's_lshl_b32 {sT0}, {sJ}, 1'); e(f's_add_u32 {sT0}, {sT0}, {sTT}')
    e(f's_mul_i32 {sT1}, {sCT}, 224'); e(f'v_add_u32 v{T[4]}, {sT1}, v{L}')
    e(f's_cmp_lt_u32 {sT0}, 7')
    e(f's_cselect_b32 s52, s{pWK}, s{pWV}'); e(f's_cselect_b32 s53, s{pWK+1}, s{pWV+1}'); e(f's_cselect_b32 {sT2}, 0, 7')
    e(f's_sub_u32 {sT2}, {sT0}, {sT2}'); e(f's_lshl_b32 {sT2}, {sT2}, 3')
    e('s_and_b32 s53, s53, 0xffff'); e('s_mov_b32 s55, 0x00020000')
    e(f's_cmp_lt_u32 {sT0}, 14'); e(f's_cselect_b32 s54, {448*56}, 0')
    e(f'v_mul_u32_u24 v{T[5]}, 56, v{T[4]}')
    rows = (0, 64, 128, 160)
    e(f's_cmp_eq_u32 {sT0}, 14'); e('s_cbranch_scc1 L_ext_gate')
    for i, r in enumerate(rows):
        e(f's_add_u32 {sT3}, {sT2}, {r*56}')
        e(f'buffer_load_dwordx2 {vr(EXT+2*i, 2)}, v{T[5]}, {SEX}, {sT3} offen')
    e('s_branch L_ext_done')
    p.vm -= 4
    p.label('L_ext_gate')
    e(f's_mov_b32 s52, s{pGW}'); e(f's_and_b32 s53, s{pGW+1}, 0xffff'); e('s_mov_b32 s54, 896')
    e(f'v_lshlrev_b32 v{T[5]}, 1, v{T[4]}')
    for i, r in enumerate(rows):
        e(f'v_mov_b32 v{EXT+2*i+1}, 0')
        tEX = e(f'buffer_load_ushort v{EXT+2*i}, v{T[5]}, {SEX}, 0 offen offset:{r*2}')
    p.label('L_ext_done')
    e(f's_lshl_b32 {sT0}, {sTT}, 3'); e(f's_add_u32 {sT0}, {sT0}, 112')
    e(f'v_bfe_u32 v{T[5]}, v{T[4]}, 1, 1'); e(f'v_lshlrev_b32 v{T[5]}, 6, v{T[5]}'); e(f'v_xor_b32 v{T[5]}, {sT0}, v{T[5]}')
    e(f'v_lshl_add_u32 v{T[5]}, v{T[4]}, 7, v{T[5]}'); e(f'v_add_u32 v{T[5]}, {WQ_OFF}, v{T[5]}')
    e(f's_mul_i32 {sW1A}, {sJ}, 448'); e(f's_lshl_b32 {sT0}, {sW}, 6'); e(f's_add_u32 {sW1A}, {sW1A}, {sT0}')
    e(f's_add_u32 {sW1B}, {sW1A}, 256'); e(f's_cmp_eq_u32 {sW}, 3'); e(f's_cselect_b32 {sW1B}, {BIG}, {sW1B}')
    srd(SW2, pW2, 1792*896)
    e(f's_mul_i32 {sW2O}, {sJ}, {224*896}'); e(f's_mul_i32 {sT0}, {sW}, 3'); e(f's_cmp_eq_u32 {sW}, 3'); e(f's_cselect_b32 {sN0}, 10, {sT0}')
    e(f's_lshl_b32 {sT0}, {sN0}, 6'); e(f's_add_u32 {sW2O}, {sW2O}, {sT0}')
    e(f's_cmp_lt_u32 {sW}, 2'); e(f's_cselect_b32 {sW2D}, {BIG}, {sW2O}')
    slab_tok = {}
    NS1 = 56; NSL = NS1 + 56
    def dma_slab(n):
        if n >= NSL: return
        slot = n % NSLOT
        if n < NS1:
            s = n % 28; imm = (slot & 3) * 1024
            if slot % 4 == 0: e(f's_add_u32 m0, {sRING}, {slot*1024}')
            e(f's_add_u32 {sOFF}, {sW1A if n < 28 else sW1B}, {s*57344 - imm}')
            slab_tok[n] = e(f'buffer_load_dwordx4 v{vSL1}, {SW1}, {sOFF} offen offset:{imm} lds')
        else:
            k, i = divmod(n - NS1, 4)
            e(f's_add_u32 m0, {sRING}, {slot*1024 - i*64}')
            if i == 0: e(f's_add_u32 {sOFF}, {sW2O}, {k*14336}')
            if i == 3: e(f's_add_u32 {sOFF}, {sW2D}, {k*14336}')
            slab_tok[n] = e(f'buffer_load_dwordx4 v{vSL2}, {SW2}, {sOFF} offen offset:{i*64} lds')
    for n in range(NSLOT): dma_slab(n)
    e(f'v_lshrrev_b32 v{T[6]}, 3, v{L}'); e(f'v_mul_u32_u24 v{T[6]}, 3584, v{T[6]}'); e(f'v_and_b32 v{T[7]}, 7, v{L}'); e(f'v_lshl_add_u32 v{T[6]}, v{T[7]}, 7, v{T[6]}')
    e(f'v_lshlrev_b32 v{T[7]}, 7, v{L}')
    e(f's_mul_i32 {sT0}, {sI}, {14*3584}'); e(f's_mul_i32 {sT1}, {sQ4}, 896'); e(f's_add_u32 {sT0}, {sT0}, {sT1}'); e(f's_mul_i32 {sT1}, {sTT}, {8*3584}'); e(f's_add_u32 {sT0}, {sT0}, {sT1}')
    e(f's_mul_i32 {sT1}, {sI}, 12544'); e(f's_mul_i32 {sT2}, {sQ4}, {448*896}'); e(f's_add_u32 {sT1}, {sT1}, {sT2}'); e(f's_lshl_b32 {sT2}, {sTT}, 13'); e(f's_add_u32 {sT1}, {sT1}, {sT2}')
    e(f's_cmp_lt_u32 {sW}, 2'); e('s_cbranch_scc0 L_pf2')
    e(f'buffer_load_dword v{DUM}, v{T[6]}, {SW1}, {sT0} offen')
    e('s_branch L_pf3'); p.vm -= 1
    p.label('L_pf2')
    e(f'buffer_load_dword v{DUM}, v{T[7]}, {SW2}, {sT1} offen')
    p.label('L_pf3')
    e(f's_lshl_b32 {sT0}, {sW}, 13'); e(f'v_add_u32 v{T[7]}, {sT0}, v{T[7]}'); e(f'v_min_u32 v{T[7]}, (L_code_end-{K}-64), v{T[7]}')
    e(f'global_load_dword v{DUM+1}, v{T[7]}, s[14:15]')
    srd(SB, pB1, 3584)
    e(f'v_lshrrev_b32 v{T[6]}, 5, v{L}'); e(f'v_lshlrev_b32 v{T[6]}, 3, v{T[6]}')
    vH8 = 29; e(f'v_mov_b32 v{vH8}, v{T[6]}')
    for ps in range(2):
        for q in range(4):
            tB = e(f'buffer_load_dwordx2 {vr(BRAW + ps*8 + 2*q, 2)}, v{T[6]}, {SB}, {sW1A} offen offset:{ps*256 + 16*q}')
    p.wait(tEX)
    for i, r in enumerate(rows): tE = e(f'ds_write_b64 v{T[5]}, {vr(EXT+2*i, 2)} offset:{r*128}')
    e(f'v_readfirstlane_b32 {sTAG}, v{vG}'); e(f's_add_u32 {sTAG}, {sTAG}, 1')
    p.wait(tE); e('s_barrier')
    if stop == 'load': return finish(p)
    D = 3
    tk = {}
    def qkv_read(s):
        kb = s >> 2; st = aWR + 4 * (s % 8)
        e(f'ds_read_b128 {ar(4*s, 4)}, v{vXO[s&3]} offset:{kb*8192}')
        e(f'ds_read_b64_tr_b16 {ar(st, 2)}, v{vWQR} offset:{s*2048}')
        tk[s] = e(f'ds_read_b64_tr_b16 {ar(st+2, 2)}, v{vWQR} offset:{s*2048 + 512}')
        e(f'ds_read_b128 {ar(112 + 4*s, 4)}, v{vXT[s&3]} offset:{kb*8192}')
    for s in range(D): qkv_read(s)
    for s in range(28):
        if s + D < 28: qkv_read(s + D)
        p.wait(tk[s])
        st = aWR + 4 * (s % 8)
        e(f'{MFMA} {vr(QACC,16)}, {ar(st,4)}, {ar(4*s,4)}, {vr(QACC,16) if s else 0}')
    p.wait(tB)
    for ps, B in ((0, BIAS_A), (1, BIAS_B)):
        for q in range(4):
            for d in range(2):
                r = BRAW + ps*8 + 2*q + d
                e(f'v_lshlrev_b32 v{B + 4*q + 2*d}, 16, v{r}'); e(f'v_and_b32 v{B + 4*q + 2*d + 1}, 0xffff0000, v{r}')
    e('s_waitcnt lgkmcnt(0)'); e('s_barrier')
    vE0, vE1, vZ = T[0], T[1], T[2]
    e(f'v_cvt_pk_bf16_f32 v{vE0}, v{QACC+12}, v{QACC+13}'); e(f'v_cvt_pk_bf16_f32 v{vE1}, v{QACC+14}, v{QACC+15}'); e(f'v_mov_b32 v{vZ}, v{QACC+12}')
    e(f's_mov_b32 {sT0}, {f32(math.log2(math.e)/math.sqrt(28.0))}')
    for r in range(16): e(f'v_mul_f32 v{QACC+r}, {sT0}, v{QACC+r}')
    for i in range(8): e(f'v_cvt_pk_bf16_f32 v{vQP+i}, v{QACC+2*i}, v{QACC+2*i+1}')
    e(f'v_cndmask_b32 v{vQP+6}, v{vQP+6}, 0, {sHI}'); e(f'v_cndmask_b32 v{vQP+7}, v{vQP+7}, 0, {sHI}')
    e(f's_lshl_b32 {sT0}, {sW}, 11'); e(f's_add_u32 {sT0}, {sT0}, {QX_OFF}'); e(f'v_add_u32 v{28}, {sT0}, v{vL16}')
    e(f'ds_write_b128 v28, {vr(vQP,4)}'); e(f'ds_write_b128 v28, {vr(vQP+4,4)} offset:1024')
    e(f's_lshl_b32 {sCH}, {sJ}, 1'); e(f's_add_u32 {sCH}, {sCH}, {sCT}')
    e(f's_lshl_b32 {sT0}, {sG}, 1'); e(f's_add_u32 {sT0}, {sT0}, {sTT}'); e(f's_lshl_b32 {sT1}, {sT0}, 12'); e(f's_add_u32 {sT1}, {sT1}, {WS_KV}')
    e(f'v_and_b32 v{T[4]}, 31, v{L}')
    e(f's_mov_b64 exec, {sHI}')
    e(f's_cmp_ge_u32 {sCH}, 7'); e('s_cbranch_scc1 L_ex_notk')
    e(f's_lshr_b32 {sT2}, {sCH}, 2'); e(f's_lshl_b32 {sT2}, {sT2}, 10'); e(f's_and_b32 {sT3}, {sCH}, 1'); e(f's_lshl_b32 {sT3}, {sT3}, 9'); e(f's_add_u32 {sT2}, {sT2}, {sT3}')
    e(f's_and_b32 {sT3}, {sCH}, 2'); e(f's_lshl_b32 {sT3}, {sT3}, 2'); e(f's_add_u32 {sT2}, {sT2}, {sT3}'); e(f's_add_u32 {sT1}, {sT1}, {sT2}')
    e(f'v_lshlrev_b32 v{T[4]}, 4, v{T[4]}')
    e(f'buffer_store_dwordx2 {vr(vE0,2)}, v{T[4]}, {SWS}, {sT1} offen sc1')
    e('s_branch L_ex_done')
    p.label('L_ex_notk')
    e(f's_cmp_ge_u32 {sCH}, 14'); e('s_cbranch_scc1 L_ex_notv')
    e(f's_sub_u32 {sT2}, {sCH}, 7'); e(f's_lshl_b32 {sT2}, {sT2}, 6'); e(f's_add_u32 {sT1}, {sT1}, {sT2}')
    e(f'v_lshrrev_b32 v{T[5]}, 4, v{T[4]}'); e(f'v_lshlrev_b32 v{T[5]}, 10, v{T[5]}')
    e(f'v_bfe_u32 v{T[6]}, v{T[4]}, 2, 1'); e(f'v_lshl_add_u32 v{T[5]}, v{T[6]}, 9, v{T[5]}')
    e(f'v_bfe_u32 v{T[6]}, v{T[4]}, 3, 1'); e(f'v_lshl_add_u32 v{T[5]}, v{T[6]}, 3, v{T[5]}')
    e(f'v_and_b32 v{T[6]}, 3, v{T[4]}'); e(f'v_lshl_add_u32 v{T[5]}, v{T[6]}, 1, v{T[5]}')
    e(f'buffer_store_short v{vE0}, v{T[5]}, {SWS}, {sT1} offen offset:2048 sc1')
    e(f'buffer_store_short_d16_hi v{vE0}, v{T[5]}, {SWS}, {sT1} offen offset:{2048+16} sc1')
    e(f'buffer_store_short v{vE1}, v{T[5]}, {SWS}, {sT1} offen offset:{2048+32} sc1')
    e(f'buffer_store_short_d16_hi v{vE1}, v{T[5]}, {SWS}, {sT1} offen offset:{2048+48} sc1')
    e('s_branch L_ex_done')
    p.label('L_ex_notv')
    e(f's_cmp_eq_u32 {sCH}, 15'); e('s_cbranch_scc1 L_ex_const')
    e(f's_lshl_b32 {sT1}, {sT0}, 7'); e(f's_add_u32 {sT1}, {sT1}, {WS_Z}'); e(f'v_lshlrev_b32 v{T[4]}, 2, v{T[4]}')
    e(f'buffer_store_dword v{vZ}, v{T[4]}, {SWS}, {sT1} offen sc1')
    e('s_branch L_ex_done')
    p.label('L_ex_const')
    e(f'v_mov_b32 v{vE0}, 0x3f80'); e(f'v_mov_b32 v{vE1}, 0'); e(f'v_lshlrev_b32 v{T[5]}, 4, v{T[4]}')
    e(f'buffer_store_dwordx2 {vr(vE0,2)}, v{T[5]}, {SWS}, {sT1} offen offset:{1024+512+8} sc1')
    e(f'v_bfe_u32 v{T[5]}, v{T[4]}, 2, 2'); e(f'v_lshlrev_b32 v{T[5]}, 9, v{T[5]}'); e(f'v_and_b32 v{T[6]}, 3, v{T[4]}'); e(f'v_lshl_add_u32 v{T[5]}, v{T[6]}, 4, v{T[5]}')
    e(f'v_cmp_eq_u32 vcc, 0, v{T[6]}'); e(f'v_mov_b32 v{T[7]}, 0x3f803f80'); e(f'v_cndmask_b32 v{EXT}, 0, v{T[7]}, vcc')
    e(f'v_mov_b32 v{EXT+1}, v{EXT}'); e(f'v_mov_b32 v{EXT+2}, v{EXT}'); e(f'v_mov_b32 v{EXT+3}, v{EXT}')
    e(f'buffer_store_dwordx4 {vr(EXT,4)}, v{T[5]}, {SWS}, {sT1} offen offset:{2048+28*16} sc1')
    p.label('L_ex_done')
    e('s_mov_b64 exec, -1')
    p.vm -= 7
    tEXS = ('vm', p.vm)
    if stop == 'qkv': return finish(p)
    def gelu_ops(acc, hw_own, hw_oth, hoff):
        ops = []
        k0 = f32(-2.0*math.log2(math.e)*math.sqrt(2/math.pi))
        for t in range(2):
            for s2 in range(2):
                base = acc + 16*t + 8*s2
                gp = GP + 4*((2*t + s2) & 1)
                for hf in range(2):
                    us = [base + 4*hf + i for i in range(4)]; ts = GT[4*hf:4*hf+4]
                    for fn in (lambda u, x: f'v_mul_f32 v{x}, v{u}, v{u}', lambda u, x: f'v_fmaak_f32 v{x}, v{x}, v{vK1}, {k0}',
                               lambda u, x: f'v_mul_f32 v{x}, v{u}, v{x}', lambda u, x: f'v_exp_f32 v{x}, v{x}',
                               lambda u, x: f'v_add_f32 v{x}, 1.0, v{x}', lambda u, x: f'v_rcp_f32 v{x}, v{x}',
                               lambda u, x: f'v_mul_f32 v{x}, v{u}, v{x}'):
                        for u, x in zip(us, ts): ops.append((lambda s=fn(u, x): e(s)))
                    for i in range(2): ops.append((lambda s=f'v_cvt_pk_bf16_f32 v{gp+2*hf+i}, v{ts[2*i]}, v{ts[2*i+1]}': e(s)))
                ops.append((lambda s=f'ds_write_b128 v{hw_own if t == 0 else hw_oth}, {vr(gp,4)} offset:{hoff + s2*1024}': e(s)))
        return ops
    rtok = {}
    def w1_read(n):
        slot = n % NSLOT; st = aWR + 4 * (n % 8)
        p.wait(slab_tok[n])
        e(f'ds_read_b64_tr_b16 {ar(st,2)}, v{vR1} offset:{slot*1024}')
        rtok[n] = e(f'ds_read_b64_tr_b16 {ar(st+2,2)}, v{vR1} offset:{slot*1024 + 256}')
    D1 = 3
    for n in range(D1): w1_read(n)
    fill = Filler([])
    for n in range(NS1):
        s = n % 28; acc = ACC_A if n < 28 else ACC_B; B = BIAS_A if n < 28 else BIAS_B
        if n == 29: fill = Filler(gelu_ops(ACC_A, vHWO, vHWT, 0))
        if n + D1 < NS1: w1_read(n + D1)
        p.wait(rtok[n])
        st = aWR + 4 * (n % 8)
        e(f'{MFMA} {vr(acc,16)}, {ar(st,4)}, {ar(4*s,4)}, {vr(acc,16) if s else vr(B,16)}')
        fill(5)
        e(f'{MFMA} {vr(acc+16,16)}, {ar(st,4)}, {ar(112+4*s,4)}, {vr(acc+16,16) if s else vr(B,16)}')
        dma_slab(n + NSLOT)
        fill(4)
    fill.drain()
    p.wait(tEXS); e('s_waitcnt lgkmcnt(0)'); e('s_barrier')
    e(f's_cmp_lg_u32 {sW}, 0'); e('s_cbranch_scc1 L_nokvflag')
    e(f's_lshl_b32 {sT0}, s2, 4'); e(f's_add_u32 {sT0}, {sT0}, {WS_FKV}'); e(f'v_mov_b32 v{T[0]}, {sT0}'); e(f'v_mov_b32 v{T[1]}, {sTAG}')
    e('s_mov_b64 exec, 1')
    e(f'buffer_store_dword v{T[1]}, v{T[0]}, {SWS}, 0 offen sc1')
    e('s_mov_b64 exec, -1')
    p.vm -= 1
    p.label('L_nokvflag')
    fill = Filler(gelu_ops(ACC_B, vHWO, vHWT, 16384))
    aW2 = 0; aHF = 64
    ktok = {}
    def w2_read(k):
        ft, s2 = divmod(k, 2); stg = k % 3
        for t in range(2): e(f'ds_read_b128 {ar(aHF + 8*stg + 4*t, 4)}, v{vHR} offset:{ft*4096 + t*2048 + s2*1024}')
        p.wait(slab_tok[NS1 + 4*k + 3])
        for i in range(4):
            slot = (NS1 + 4*k + i) % NSLOT; st = aW2 + 16*stg + 4*i
            e(f'ds_read_b64_tr_b16 {ar(st,2)}, v{vR2} offset:{slot*1024}')
            ktok[k] = e(f'ds_read_b64_tr_b16 {ar(st+2,2)}, v{vR2} offset:{slot*1024 + 512}')
    w2_read(0)
    for k in range(14):
        if k == 7:
            fill.drain(); e('s_waitcnt lgkmcnt(0)'); e('s_barrier')
        if k + 1 < 14: w2_read(k + 1)
        p.wait(ktok[k])
        stg = k % 3
        for i in range(4):
            for t in range(2):
                acc = YACC + 32*i + 16*t
                e(f'{MFMA} {vr(acc,16)}, {ar(aW2 + 16*stg + 4*i, 4)}, {ar(aHF + 8*stg + 4*t, 4)}, {vr(acc,16) if k else 0}')
                fill(5)
            dma_slab(NS1 + 4*k + i + NSLOT)
    if stop == 'ffn_nostore': return finish(p)
    vF = T[0]
    e(f'v_add_u32 v{T[4]}, {WS_FKV}, v{vL16}')
    e(f's_mov_b32 {sCNT}, 0')
    p.label('L_kvpoll')
    for i in range(4): tF = e(f'buffer_load_dword v{T[i]}, v{T[4]}, {SWS}, 0 offen offset:{i*1024} sc1')
    p.wait(tF)
    for i in range(4): e(f'v_xor_b32 v{T[i]}, {sTAG}, v{T[i]}')
    e(f'v_or3_b32 v{T[0]}, v{T[0]}, v{T[1]}, v{T[2]}'); e(f'v_or_b32 v{T[0]}, v{T[0]}, v{T[3]}')
    e(f'v_cmp_ne_u32 vcc, 0, v{T[0]}'); e(f's_add_u32 {sCNT}, {sCNT}, 1')
    e('s_cbranch_vccz L_kvok')
    e(f's_cmp_lt_u32 {sCNT}, 20000'); e('s_sleep 2'); e('s_cbranch_scc1 L_kvpoll')
    p.label('L_kvok')
    SK = 56
    e(f's_lshl_b32 {sKVB}, {sW}, 16'); e(f's_add_u32 {sKVB}, {sKVB}, {WS_KV}'); e(f's_mov_b32 {sT0}, {WS_KV}')
    e(f'buffer_load_dwordx4 {vr(SK,4)}, v{vL16}, {SWS}, {sT0} offen sc1')
    tSK = e(f'buffer_load_dwordx4 {vr(SK+4,4)}, v{vL16}, {SWS}, {sT0} offen offset:1024 sc1')
    kvtok = {}
    def kv_load(kb):
        e(f's_add_u32 {sOFF}, {sKVB}, {kb*4096}')
        for q in range(4): kvtok[(kb, q)] = e(f'buffer_load_dwordx4 {ar(16*kb + 4*q, 4)}, v{vL16}, {SWS}, {sOFF} offen offset:{q*1024} sc1')
    NPRE = 10
    for kb in range(NPRE): kv_load(kb)
    e(f's_add_u32 {sT0}, s2, {sW}'); e(f's_cmp_lg_u32 {sT0}, 0'); e('s_cbranch_scc1 L_nobump')
    e(f'v_mov_b32 v{T[0]}, {WS_G}'); e(f'v_mov_b32 v{T[1]}, {sTAG}'); e('s_mov_b64 exec, 1')
    e(f'buffer_store_dword v{T[1]}, v{T[0]}, {SWS}, 0 offen sc1'); e('s_mov_b64 exec, -1'); p.vm -= 1
    p.label('L_nobump')
    e(f's_lshl_b32 {sT0}, {sG}, 3'); e(f's_add_u32 {sT0}, {sT0}, {sJ}'); e(f's_mul_i32 {sYB}, {sT0}, 57344'); e(f's_add_u32 {sYB}, {sYB}, {WS_Y}')
    e(f's_lshl_b32 {sT0}, {sN0}, 11'); e(f's_add_u32 {sT1}, {sYB}, {sT0}')
    e(f's_cmp_lt_u32 {sW}, 2'); e(f's_cselect_b32 {sT2}, {BIG}, {sT1}')
    for i in range(4):
        for t in range(2):
            acc = YACC + 32*i + 16*t
            for q in range(8): e(f'v_cvt_pk_bf16_f32 v{acc+q}, v{acc+2*q}, v{acc+2*q+1}')
            e(f's_add_u32 {sOFF}, {sT2 if i == 3 else sT1}, {t*28672 + i*2048}')
            e(f'buffer_store_dwordx4 {vr(acc,4)}, v{vL16}, {SWS}, {sOFF} offen sc1')
            tYS = e(f'buffer_store_dwordx4 {vr(acc+4,4)}, v{vL16}, {SWS}, {sOFF} offen offset:1024 sc1')
    if stop == 'ffn': return finish(p)
    vQ = 64; vO = 96; S = [160, 176]; P = [192, 200]
    for u in range(4):
        if u: e(f'v_xor_b32 v{T[u]}, {u*2048}, v28')
        a = f'v{T[u]}' if u else 'v28'
        e(f'ds_read_b128 {vr(vQ + 8*u, 4)}, {a}'); tQ = e(f'ds_read_b128 {vr(vQ + 8*u + 4, 4)}, {a} offset:1024')
    p.wait(tQ, tSK)
    SS = [160, 176, 208, 224]
    for u in range(4):
        e(f'{MFMA} {vr(SS[u],16)}, {vr(SK,4)}, {vr(vQ+8*u,4)}, 0'); e(f'{MFMA} {vr(SS[u],16)}, {vr(SK+4,4)}, {vr(vQ+8*u+4,4)}, {vr(SS[u],16)}')
    def rowmax(s, m, t):
        e(f'v_max3_f32 v{m}, v{s}, v{s+1}, v{s+2}')
        for r in range(3, 15, 2): e(f'v_max3_f32 v{m}, v{m}, v{s+r}, v{s+r+1}')
        e(f'v_max_f32 v{m}, v{m}, v{s+15}'); e(f'v_mov_b32 v{t}, v{m}')
        e(f'v_permlane32_swap_b32 v{t}, v{m}'); e(f'v_max_f32 v{m}, v{m}, v{t}')
    for u in range(4):
        rowmax(SS[u], T[4], T[5])
        e(f'v_cvt_pk_bf16_f32 v{T[4]}, -v{T[4]}, 0')
        e(f'v_cndmask_b32 v{vQ+8*u+6}, v{vQ+8*u+6}, v{T[4]}, {sHI}')
    srd(SWO, pWO, 448*896)
    e(f's_mul_i32 {sN0}, {sJ}, 112'); e(f's_and_b32 {sT0}, {sJ}, 1'); e(f's_lshl_b32 {sT0}, {sT0}, 4'); e(f's_sub_u32 {sN0}, {sN0}, {sT0}')
    e(f's_mul_i32 {sT4}, {sW}, {15*7168}'); e(f's_add_u32 {sT4}, {sT4}, {sN0}'); e(f's_mul_i32 {sT5}, {sW}, {15*1024}')
    e('s_waitcnt lgkmcnt(0)'); e('s_barrier')
    wotok = []
    def wo_dma(i):
        e(f's_add_u32 m0, {sT5}, {WO_OFF + i*1024}'); e(f's_add_u32 {sOFF}, {sT4}, {i*7168}')
        wotok.append(e(f'buffer_load_dwordx4 v{vWOD}, {SWO}, {sOFF} offen lds'))
    NT = 64
    def smm(n):
        kb, u = divmod(n, 4); s = S[n & 1]
        return [f'{MFMA} {vr(s,16)}, {ar(16*kb,4)}, {vr(vQ+8*u,4)}, 0', f'{MFMA} {vr(s,16)}, {ar(16*kb+4,4)}, {vr(vQ+8*u+4,4)}, {vr(s,16)}']
    def pvm(n):
        kb, u = divmod(n, 4); q = P[n & 1]; o = vO + 16*u
        return [f'{MFMA} {vr(o,16)}, {ar(16*kb+8,4)}, {vr(q,4)}, {vr(o,16) if kb else 0}', f'{MFMA} {vr(o,16)}, {ar(16*kb+12,4)}, {vr(q+4,4)}, {vr(o,16)}']
    p.wait(kvtok[(0, 1)])
    for m in smm(0): e(m)
    e('s_nop 7')
    for n in range(NT):
        kb, u = divmod(n, 4); s = S[n & 1]; q = P[n & 1]
        ms = []
        if n + 1 < NT:
            if (n + 1) % 4 == 0: p.wait(kvtok[((n + 1)//4, 1)])
            ms += smm(n + 1)
        if n >= 1:
            if (n - 1) % 4 == 0: p.wait(kvtok[((n - 1)//4, 3)])
            pv = pvm(n - 1)
            ms = [ms[0], ms[1], pv[0], pv[1]] if ms else pv
        ex = [f'v_exp_f32 v{s+r}, v{s+r}' for r in range(16)]
        cv = [f'v_cvt_pk_bf16_f32 v{q+i}, v{s+2*i}, v{s+2*i+1}' for i in range(8)]
        seq = []; ci = 0
        for r in range(16):
            if r % 4 == 0 and r // 4 < len(ms): seq.append(ms[r // 4])
            seq.append(ex[r])
            if r >= 2 and r % 2 == 0: seq.append(cv[ci]); ci += 1
        for s_ in seq: e(s_)
        if u == 1 and kb + NPRE < 16: kv_load(kb + NPRE)
        elif kb >= 6 and kb < 14 and u in (1, 3) and len(wotok) < 15: wo_dma(len(wotok))
        e(cv[7])
    for m in pvm(NT - 1): e(m)
    if stop == 'attn': return finish(p)
    e(f's_mul_i32 {sT0}, {sW}, 12288'); e(f's_add_u32 {sT0}, {sT0}, {MRG_OFF}'); e(f'v_add_u32 v{T[0]}, {sT0}, v{vL16}')
    for u in range(1, 4):
        e(f's_xor_b32 {sT1}, {sW}, {u}'); e(f's_mul_i32 {sT1}, {sT1}, 12288'); e(f's_add_u32 {sT1}, {sT1}, {MRG_OFF + (u-1)*4096}'); e(f'v_add_u32 v{T[u]}, {sT1}, v{vL16}')
    for u in range(1, 4):
        for q in range(4): e(f'ds_write_b128 v{T[u]}, {vr(vO + 16*u + 4*q, 4)} offset:{q*1024}')
    p.wait(wotok[-1]); e('s_waitcnt lgkmcnt(0)'); e('s_barrier')
    MR = 160
    mt = []
    for u in range(3):
        for q in range(4): t_ = e(f'ds_read_b128 {vr(MR + 16*u + 4*q, 4)}, v{T[0]} offset:{u*4096 + q*1024}')
        mt.append(t_)
    for u in range(3):
        p.wait(mt[u])
        for r in range(16): e(f'v_add_f32 v{vO+r}, v{vO+r}, v{MR+16*u+r}')
    vL_, vM = T[4], T[5]
    e(f'v_add_f32 v{vM}, |v{vO}|, |v{vO+1}|'); e(f'v_add_f32 v{T[6]}, |v{vO+2}|, |v{vO+3}|')
    for r in range(4, 16, 2):
        e(f'v_add_f32 v{vM}, v{vM}, |v{vO+r}|'); e(f'v_add_f32 v{T[6]}, v{T[6]}, |v{vO+r+1}|')
    e(f's_mov_b32 {sT0}, {f32(2.0**60)}')
    e(f'v_add_f32 v{vM}, v{vM}, v{T[6]}')
    e(f'v_cmp_ngt_f32 vcc, {sT0}, v{vM}')
    e('s_cbranch_vccnz L_fallback')
    p.label('L_norm')
    e(f'v_mov_b32 v{vL_}, v{vO+12}'); e(f'v_mov_b32 v{T[6]}, v{vO+12}')
    e(f'v_permlane32_swap_b32 v{T[6]}, v{vL_}')
    e(f'v_rcp_f32 v{vL_}, v{vL_}')
    for r in range(16): e(f'v_mul_f32 v{vO+r}, v{vO+r}, v{vL_}')
    for i in range(8): e(f'v_cvt_pk_bf16_f32 v{vO+i}, v{vO+2*i}, v{vO+2*i+1}')
    e(f'v_cndmask_b32 v{vO+6}, v{vO+6}, 0, {sHI}'); e(f'v_cndmask_b32 v{vO+7}, v{vO+7}, 0, {sHI}')
    e(f's_lshl_b32 {sT3}, {sG}, 16'); e(f's_add_u32 {sT3}, {sT3}, {WS_O}')
    e(f's_lshl_b32 {sT0}, {sJ}, 13'); e(f's_lshl_b32 {sT1}, {sW}, 11'); e(f's_add_u32 {sT0}, {sT0}, {sT1}'); e(f's_add_u32 {sT0}, {sT0}, {sT3}')
    e(f'buffer_store_dwordx4 {vr(vO,4)}, v{vL16}, {SWS}, {sT0} offen sc1')
    e(f'buffer_store_dwordx4 {vr(vO+4,4)}, v{vL16}, {SWS}, {sT0} offen offset:1024 sc1')
    for hh in range(16):
        for s in range(2):
            for x in range(2): e(f'ds_read_b64_tr_b16 {ar(8*hh + 4*s + 2*x, 2)}, v{vWOR} offset:{WO_OFF + (28*hh + 16*s + 8*x)*128}')
    e('s_waitcnt vmcnt(0)'); e('s_barrier')
    e(f's_lshl_b32 {sT0}, {sG}, 3'); e(f's_add_u32 {sT1}, {sT0}, {sJ}')
    e(f's_cmp_lg_u32 {sW}, 0'); e('s_cbranch_scc1 L_nooflag')
    e(f's_lshl_b32 {sT1}, {sT1}, 7'); e(f's_add_u32 {sT1}, {sT1}, {WS_FO}'); e(f'v_mov_b32 v{T[0]}, {sT1}'); e(f'v_mov_b32 v{T[1]}, {sTAG}')
    e('s_mov_b64 exec, 1'); e(f'buffer_store_dword v{T[1]}, v{T[0]}, {SWS}, 0 offen sc1'); e('s_mov_b64 exec, -1'); p.vm -= 1
    p.label('L_nooflag')
    ACA, ACB, YF, ID = 32, 48, 160, 224
    TF = [240, 241, 242]
    srd(SB, pB2, 896); srd(SOUT, pOUT, 2048*896)
    e(f's_lshl_b32 {sT1}, {sCT}, 6'); e(f's_add_u32 {sT4}, {sN0}, {sT1}')
    for q in range(4): tB2 = e(f'buffer_load_dwordx2 {vr(232 + 2*q, 2)}, v{vH8}, {SB}, {sT4} offen offset:{16*q}')
    e(f'v_and_b32 v{TF[0]}, 31, v{L}'); e(f's_lshl_b32 {sT1}, {sG}, 6'); e(f's_lshl_b32 {sT2}, {sTT}, 5'); e(f's_add_u32 {sT1}, {sT1}, {sT2}')
    e(f'v_add_u32 v{TF[0]}, {sT1}, v{TF[0]}'); e(f'v_lshlrev_b32 v{TF[1]}, 2, v{TF[0]}')
    e(f's_mov_b32 {sT2}, {WS_Z}')
    tZ = e(f'buffer_load_dword v{TF[2]}, v{TF[1]}, {SWS}, {sT2} offen sc1')
    e(f'v_and_b32 v{T[2]}, 31, v{L}'); e(f'v_lshrrev_b32 v{T[3]}, 1, v{vH8}'); e(f'v_sub_u32 v{T[2]}, v{T[2]}, v{T[3]}')
    e(f'v_mov_b32 v{T[3]}, 0x3f80'); e(f'v_mov_b32 v{T[6]}, 0x3f800000')
    for s2 in range(2):
        for d in range(4):
            nu = 16*s2 + 8*(d >> 1) + 2*(d & 1)
            e(f'v_cmp_eq_u32 vcc, {nu}, v{T[2]}'); e(f'v_cmp_eq_u32 {sSAVE}, {nu+1}, v{T[2]}')
            e(f'v_cndmask_b32 v{ID+4*s2+d}, 0, v{T[3]}, vcc'); e(f'v_cndmask_b32 v{ID+4*s2+d}, v{ID+4*s2+d}, v{T[6]}, {sSAVE}')
    e(f's_lshl_b32 {sT0}, {sG}, 10'); e(f's_add_u32 {sT0}, {sT0}, {WS_FO}')
    e(f'v_and_b32 v{T[0]}, 7, v{L}'); e(f'v_lshlrev_b32 v{T[0]}, 7, v{T[0]}')
    e(f's_mov_b32 {sCNT}, 0')
    p.label('L_opoll')
    tF = e(f'buffer_load_dword v{T[1]}, v{T[0]}, {SWS}, {sT0} offen sc1')
    p.wait(tF)
    e(f'v_cmp_ne_u32 vcc, {sTAG}, v{T[1]}'); e(f's_add_u32 {sCNT}, {sCNT}, 1')
    e('s_cbranch_vccz L_ook')
    e(f's_cmp_lt_u32 {sCNT}, 40000'); e('s_sleep 1'); e('s_cbranch_scc1 L_opoll')
    p.label('L_ook')
    e(f's_lshl_b32 {sT0}, {sTT}, 11'); e(f's_add_u32 {sT3}, {sT3}, {sT0}')
    ot = []
    for hh in range(16):
        if hh: e(f's_add_u32 {sT3}, {sT3}, 4096')
        for s in range(2): ot.append(e(f'buffer_load_dwordx4 {ar(128 + 8*hh + 4*s, 4)}, v{vL16}, {SWS}, {sT3} offen offset:{s*1024} sc1'))
    e(f's_mul_i32 {sT0}, {sG}, {8*57344}'); e(f's_add_u32 {sT0}, {sT0}, {WS_Y}'); e(f's_mul_i32 {sT1}, {sTT}, 28672'); e(f's_add_u32 {sT0}, {sT0}, {sT1}')
    e(f's_lshl_b32 {sT1}, {sT4}, 5'); e(f's_add_u32 {sT0}, {sT0}, {sT1}')
    yt = []
    for src in range(8):
        if src: e(f's_add_u32 {sT0}, {sT0}, 57344')
        for s2 in range(2): yt.append(e(f'buffer_load_dwordx4 {vr(YF + 8*src + 4*s2, 4)}, v{vL16}, {SWS}, {sT0} offen offset:{s2*1024} sc1'))
    for q in range(4):
        for d in range(2):
            r = 232 + 2*q + d
            e(f'v_lshlrev_b32 v{ACB + 4*q + 2*d}, 16, v{r}'); e(f'v_and_b32 v{ACB + 4*q + 2*d + 1}, 0xffff0000, v{r}')
    e(f'v_mul_f32 v{TF[2]}, {f32(-math.log2(math.e))}, v{TF[2]}'); e(f'v_exp_f32 v{TF[2]}, v{TF[2]}'); e(f'v_add_f32 v{TF[2]}, 1.0, v{TF[2]}'); e(f'v_rcp_f32 v{TF[2]}, v{TF[2]}')
    e('s_waitcnt lgkmcnt(0)')
    for k in range(32):
        if k % 4 == 0: p.wait(ot[k + 3])
        e(f'{MFMA} {vr(ACA,16)}, {ar(4*k,4)}, {ar(128+4*k,4)}, {vr(ACA,16) if k else 0}')
    for k in range(16):
        if k % 4 == 0: p.wait(yt[k + 3])
        e(f'{MFMA} {vr(ACB,16)}, {vr(ID + 4*(k&1),4)}, {vr(YF+4*k,4)}, {vr(ACB,16)}')
    e(f'v_mul_u32_u24 v{TF[0]}, 896, v{TF[0]}'); e(f'v_lshl_add_u32 v{TF[0]}, v{vH8}, 1, v{TF[0]}')
    for r in range(16): e(f'v_sub_f32 v{ACA+r}, v{ACA+r}, v{ACB+r}')
    for r in range(16): e(f'v_fmac_f32 v{ACB+r}, v{TF[2]}, v{ACA+r}')
    for i in range(8): e(f'v_cvt_pk_bf16_f32 v{ACA+i}, v{ACB+2*i}, v{ACB+2*i+1}')
    for qp in range(2):
        b = ACA + 4*qp
        e(f'v_permlane32_swap_b32 v{b}, v{b+2}'); e(f'v_permlane32_swap_b32 v{b+1}, v{b+3}')
    e(f's_and_b32 {sT0}, {sJ}, 1'); e(f's_lshl_b32 {sT0}, {sT0}, 1'); e(f's_add_u32 {sT0}, {sT0}, {sCT}')
    e(f's_cmp_eq_u32 {sT0}, 2'); e(f's_cselect_b32 exec_lo, 0, -1')
    e(f'buffer_store_dwordx4 {vr(ACA,4)}, v{TF[0]}, {SOUT}, {sT4} offen')
    e('s_mov_b32 exec_lo, -1')
    e(f's_cmp_eq_u32 {sT0}, 1'); e(f's_cselect_b32 exec_hi, 0, -1')
    e(f'buffer_store_dwordx4 {vr(ACA+4,4)}, v{TF[0]}, {SOUT}, {sT4} offen offset:32')
    p.label('L_end')
    e('s_endpgm')
    p.label('L_fallback')
    e('s_waitcnt vmcnt(0) lgkmcnt(0)')
    FK, FS, FP = 160, 176, 192
    e(f'v_cndmask_b32 v{vQ+6}, v{vQ+6}, 0, {sHI}')
    e(f'v_mov_b32 v{vM}, 0xff800000')
    e(f's_mov_b32 {sOFF}, {WS_KV}')
    p.label('L_fb1')
    e(f'buffer_load_dwordx4 {vr(FK,4)}, v{vL16}, {SWS}, {sOFF} offen sc1'); e(f'buffer_load_dwordx4 {vr(FK+4,4)}, v{vL16}, {SWS}, {sOFF} offen offset:1024 sc1')
    e('s_waitcnt vmcnt(0)')
    e(f'{MFMA} {vr(FS,16)}, {vr(FK,4)}, {vr(vQ,4)}, 0'); e(f'{MFMA} {vr(FS,16)}, {vr(FK+4,4)}, {vr(vQ+4,4)}, {vr(FS,16)}')
    for r in range(0, 16, 2): e(f'v_max3_f32 v{vM}, v{vM}, v{FS+r}, v{FS+r+1}')
    e(f's_add_u32 {sOFF}, {sOFF}, 4096'); e(f's_cmp_lt_u32 {sOFF}, {WS_KV + 64*4096}'); e('s_cbranch_scc1 L_fb1')
    e(f'v_mov_b32 v{T[6]}, v{vM}'); e(f'v_permlane32_swap_b32 v{T[6]}, v{vM}'); e(f'v_max_f32 v{vM}, v{vM}, v{T[6]}')
    for r in range(16): e(f'v_mov_b32 v{vO+r}, 0')
    e(f's_mov_b32 {sOFF}, {WS_KV}')
    p.label('L_fb2')
    for q in range(4): e(f'buffer_load_dwordx4 {vr(FK+4*q if q < 2 else 200+4*(q-2),4)}, v{vL16}, {SWS}, {sOFF} offen offset:{q*1024} sc1')
    e('s_waitcnt vmcnt(0)')
    e(f'{MFMA} {vr(FS,16)}, {vr(FK,4)}, {vr(vQ,4)}, 0'); e(f'{MFMA} {vr(FS,16)}, {vr(FK+4,4)}, {vr(vQ+4,4)}, {vr(FS,16)}')
    for r in range(16): e(f'v_sub_f32 v{FS+r}, v{FS+r}, v{vM}')
    for r in range(16): e(f'v_exp_f32 v{FS+r}, v{FS+r}')
    for i in range(8): e(f'v_cvt_pk_bf16_f32 v{FP+i}, v{FS+2*i}, v{FS+2*i+1}')
    e(f'{MFMA} {vr(vO,16)}, {vr(200,4)}, {vr(FP,4)}, {vr(vO,16)}'); e(f'{MFMA} {vr(vO,16)}, {vr(204,4)}, {vr(FP+4,4)}, {vr(vO,16)}')
    e(f's_add_u32 {sOFF}, {sOFF}, 4096'); e(f's_cmp_lt_u32 {sOFF}, {WS_KV + 64*4096}'); e('s_nop 7'); e('s_cbranch_scc1 L_fb2')
    e('s_nop 15')
    e('s_branch L_norm')
    p.label('L_code_end')
    return p

def finish(p):
    p.e('s_waitcnt vmcnt(0) lgkmcnt(0)')
    p.label('L_end'); p.e('s_endpgm'); p.label('L_code_end')
    return p

HEADER = open('cdna_kernels/' + NAME + '.s.ref').read().split('; Override launch')[0]

def emit(path, **kw):
    p = build(**kw)
    errs = p.check_branches() + p.check_counters()
    for x in errs: print('CHECK:', x)
    K = NAME + '_kernel'
    s = HEADER + f'; @launch grid=(256,1,1) block=(256,1,1) lds={LDS_BYTES}\n'
    s += f'.amdgcn_target "amdgcn-amd-amdhsa--gfx950"\n.text\n.globl {K}\n.p2align 8\n.type {K},@function\n'
    s += p.text()
    s += f'''.section .rodata,"a"
.p2align 6
.amdhsa_kernel {K}
  .amdhsa_next_free_vgpr 512
  .amdhsa_next_free_sgpr 102
  .amdhsa_accum_offset 256
  .amdhsa_group_segment_fixed_size 0
  .amdhsa_kernarg_size 112
  .amdhsa_user_sgpr_count 2
  .amdhsa_user_sgpr_kernarg_segment_ptr 1
  .amdhsa_system_sgpr_workgroup_id_x 1
.end_amdhsa_kernel
'''
    open(path, 'w').write(s)
    print('instructions:', len(p.ins), 'auto nops:', p.auto_nops, 'errors:', len(errs))

if __name__ == '__main__':
    import argparse
    ap = argparse.ArgumentParser(); ap.add_argument('-o', default='cdna_kernels/' + NAME + '.s'); ap.add_argument('--stop', default=None)
    a = ap.parse_args()
    emit(a.o, stop=a.stop)
```
